```python
import torch

def _softmax(x, axis=-1):
    return torch.softmax(x, dim=axis)
def _gelu(x):
    return torch.nn.functional.gelu(x, approximate="tanh")
def _silu(x):
    return torch.nn.functional.silu(x)
def _sigmoid(x):
    return torch.sigmoid(x)
def _layernorm(x, axis=-1, eps=1e-5):
    m = x.mean(dim=axis, keepdim=True)
    v = x.var(dim=axis, keepdim=True, unbiased=False)
    return (x - m) / torch.sqrt(v + eps)
def _scatter_add(tgt, idx, src, axis=0):
    return tgt.clone().index_add_(axis, idx, src)
def _segment_sum(src, seg, n):
    out = torch.zeros((n,) + src.shape[1:], dtype=src.dtype)
    return out.index_add_(0, seg, src)
def _pad(x, pw):
    flat = tuple(v for pair in reversed(pw) for v in pair)
    return torch.nn.functional.pad(x, flat)

kernel_name = 'standalone__grn__sampling'

def setup_inputs():

    _w = (lambda a: (lambda t: t.to(torch.bfloat16) if t.is_floating_point() else t)(torch.as_tensor(a)))
    B, S, D = 1024, 32, 448
    return {
        "x": _w((lambda *s: torch.randn(*s, dtype=torch.bfloat16) * 0.05)(B, S, D)),
        "g": _w((lambda *s: torch.randn(*s, dtype=torch.bfloat16) * 0.4)(D) * 0.1),
        "b": _w((lambda *s: torch.randn(*s, dtype=torch.bfloat16) * 0.1)(D) * 0.1),
    }

def reference(x, g, b):
    gx = torch.sqrt((x * x).sum(axis=-2, keepdims=True))
    nx = gx / (gx.mean(axis=-1, keepdims=True) + 1e-6)
    return g * (x * nx) + b + x
```

```python
import sys, re
def stamp(asm):
    L = asm.split("\n"); out = []
    first_wait = True; nst = 0
    last_store = max(i for i, l in enumerate(L) if "buffer_store_dwordx4" in l)
    first_store = min(i for i, l in enumerate(L) if "buffer_store_dwordx4" in l)
    sq = min(i for i, l in enumerate(L) if "v_sqrt_f32" in l or "ds_write_b128" in l)
    firstvm = min(i for i, l in enumerate(L) if "s_waitcnt vmcnt" in l)
    for i, l in enumerate(L):
        if "s_load_dwordx4 s[4:7]" in l:
            out.append("    s_memrealtime s[60:61]")
            out.append("    s_load_dwordx2 s[58:59], s[0:1], 32")
        if i == sq:
            out.append("    s_memrealtime s[64:65]")
        if i == first_store:
            out.append("    s_memrealtime s[66:67]")
        out.append(l)
        if first_wait and "s_waitcnt lgkmcnt(0)" in l:
            out.append("    s_memrealtime s[70:71]"); first_wait = False
        if i == firstvm:
            out.append("    s_memrealtime s[62:63]")
        if i == last_store:
            out.append("    s_memrealtime s[72:73]")
            out.append("    s_waitcnt vmcnt(0)")
            out.append("    s_memrealtime s[68:69]")
            out.append("    s_waitcnt lgkmcnt(0)")
            out.append("    s_mov_b64 exec, -1")
            for k, s in enumerate((60, 70, 62, 64, 66, 72, 68)):
                out.append(f"    s_not_b32 s74, s{s}")
                out.append(f"    v_writelane_b32 v4, s74, {2*k}")
                out.append(f"    v_writelane_b32 v4, s{s}, {2*k+1}")
            out.append("    v_mbcnt_lo_u32_b32 v5, -1, 0")
            out.append("    v_mbcnt_hi_u32_b32 v5, -1, v5")
            out.append("    v_lshlrev_b32 v5, 2, v5")
            out.append("    s_mov_b32 s76, s58"); out.append("    s_mov_b32 s77, s59")
            out.append("    s_mov_b32 s78, 56"); out.append("    s_mov_b32 s79, 0x20000")
            out.append("    s_mov_b64 exec, 0x3fff")
            out.append("    buffer_atomic_umax v4, v5, s[76:79], 0 offen")
    s = "\n".join(out)
    return re.sub(r"next_free_sgpr \d+", "next_free_sgpr 96", s)
if __name__ == "__main__":
    open(sys.argv[2], "w").write(stamp(open(sys.argv[1]).read()))
```

```python
import sys, re
def stamp(asm):
    L = asm.split("\n"); out = []
    first_wait = True; nst = 0
    last_store = max(i for i, l in enumerate(L) if "buffer_store_dwordx4" in l)
    first_store = min(i for i, l in enumerate(L) if "buffer_store_dwordx4" in l)
    sq = min(i for i, l in enumerate(L) if "v_sqrt_f32" in l or "ds_write_b128" in l)
    firstvm = min(i for i, l in enumerate(L) if "s_waitcnt vmcnt" in l)
    for i, l in enumerate(L):
        if "s_load_dwordx4 s[4:7]" in l:
            out.append("    s_memrealtime s[60:61]")
            out.append("    s_lshr_b32 s75, s2, 3")
            out.append("    s_load_dwordx2 s[58:59], s[0:1], 32")
        if i == sq:
            out.append("    s_memrealtime s[64:65]")
        if i == first_store:
            out.append("    s_memrealtime s[66:67]")
        out.append(l)
        if first_wait and "s_waitcnt lgkmcnt(0)" in l:
            out.append("    s_memrealtime s[70:71]"); first_wait = False
        if i == firstvm:
            out.append("    s_memrealtime s[62:63]")
        if i == last_store:
            out.append("    s_memrealtime s[72:73]")
            out.append("    s_waitcnt vmcnt(0)")
            out.append("    s_memrealtime s[68:69]")
            out.append("    s_waitcnt lgkmcnt(0)")
            out.append("    s_and_b32 s74, s75, 31")
            out.append("    s_cmp_lg_u32 s74, 5")
            out.append("    s_cbranch_scc1 L_done")
            out.append("    s_mov_b64 exec, -1")
            for k, s in enumerate((60, 70, 62, 64, 66, 72, 68)):
                out.append(f"    s_not_b32 s74, s{s}")
                out.append(f"    v_writelane_b32 v4, s74, {2*k}")
                out.append(f"    v_writelane_b32 v4, s{s}, {2*k+1}")
            out.append("    v_mbcnt_lo_u32_b32 v5, -1, 0")
            out.append("    v_mbcnt_hi_u32_b32 v5, -1, v5")
            out.append("    v_lshlrev_b32 v5, 2, v5")
            out.append("    s_mov_b32 s76, s58"); out.append("    s_mov_b32 s77, s59")
            out.append("    s_mov_b32 s78, 56"); out.append("    s_mov_b32 s79, 0x20000")
            out.append("    s_mov_b64 exec, 0x3fff")
            out.append("    buffer_atomic_umax v4, v5, s[76:79], 0 offen")
    s = "\n".join(out)
    return re.sub(r"next_free_sgpr \d+", "next_free_sgpr 96", s)
if __name__ == "__main__":
    open(sys.argv[2], "w").write(stamp(open(sys.argv[1]).read()))
```
